```python
import torch

def _softmax(x, axis=-1):
    return torch.softmax(x, dim=axis)
def _gelu(x):
    return torch.nn.functional.gelu(x, approximate="tanh")
def _silu(x):
    return torch.nn.functional.silu(x)
def _sigmoid(x):
    return torch.sigmoid(x)
def _layernorm(x, axis=-1, eps=1e-5):
    m = x.mean(dim=axis, keepdim=True)
    v = x.var(dim=axis, keepdim=True, unbiased=False)
    return (x - m) / torch.sqrt(v + eps)
def _scatter_add(tgt, idx, src, axis=0):
    return tgt.clone().index_add_(axis, idx, src)
def _segment_sum(src, seg, n):
    out = torch.zeros((n,) + src.shape[1:], dtype=src.dtype)
    return out.index_add_(0, seg, src)
def _pad(x, pw):
    flat = tuple(v for pair in reversed(pw) for v in pair)
    return torch.nn.functional.pad(x, flat)

kernel_name = 'standalone__rezero__sampling'

def setup_inputs():

    _w = (lambda a: (lambda t: t.to(torch.bfloat16) if t.is_floating_point() else t)(torch.as_tensor(a)))
    B, S, D = 1024, 8, 640
    return {
        "x": _w((lambda *s: torch.randn(*s, dtype=torch.bfloat16) * 0.05)(B, S, D)),
        "fx": _w((lambda *s: torch.randn(*s, dtype=torch.bfloat16) * 0.8)(B, S, D)),
        "alpha": _w((lambda *s: torch.randn(*s, dtype=torch.bfloat16) * 0.8)(1) * 0.1),
    }

def reference(x, fx, alpha):
    return x + alpha * fx
```

```python
import sys, argparse

HEADER = """; Kernarg layout for this problem (48 bytes, ptrs only, base s[0:1]):
"""
NCHUNK = 655360

def compute(out, F, X, T, sA):
    for d in range(4):
        f = F + d; x = X + d
        out.append(f"    v_lshlrev_b32 v{T}, 16, v{f}")
        out.append(f"    v_and_b32 v{T+1}, s3, v{f}")
        out.append(f"    v_lshlrev_b32 v{T+2}, 16, v{x}")
        out.append(f"    v_pk_mul_f32 v[{T}:{T+1}], s[{sA}:{sA+1}], v[{T}:{T+1}] op_sel_hi:[0,1]")
        out.append(f"    v_and_b32 v{T+3}, s3, v{x}")
        out.append(f"    v_cvt_pk_bf16_f32 v{T}, 0, v{T}")
        out.append(f"    v_cvt_pk_bf16_f32 v{T+1}, 0, v{T+1}")
        out.append(f"    v_pk_add_f32 v[{T}:{T+1}], v[{T+2}:{T+3}], v[{T}:{T+1}]")
        out.append(f"    v_cvt_pk_bf16_f32 v{x}, v{T}, v{T+1}")

def gen(block=256, U=2, layout="wave", ldf="", stf="", name="standalone__rezero__sampling"):
    lanes = NCHUNK // U
    assert lanes * U == NCHUNK and lanes % block == 0
    nwg = lanes // block
    o = []
    o.append(HEADER + f"; @launch grid=({nwg},1,1) block=({block},1,1) lds=0")
    o.append('.amdgcn_target "amdgcn-amd-amdhsa--gfx950"')
    o.append(".text")
    o.append(f".globl {name}_kernel")
    o.append(".p2align 8")
    o.append(f".type {name}_kernel,@function")
    o.append(f"{name}_kernel:")
    o.append("    s_load_dwordx8 s[4:11], s[0:1], 0")
    o.append(f"    s_cmp_ge_u32 s2, {nwg}")
    o.append("    s_cbranch_scc1 L_done")
    wgbytes = block * 16 * U
    o.append(f"    s_mul_i32 s12, s2, {wgbytes}")
    o.append("    s_mov_b32 s3, 0xffff0000")
    if layout == "wave":
        if block > 64:
            o.append("    v_lshrrev_b32 v1, 6, v0")
            o.append("    v_and_b32 v0, 63, v0")
            o.append(f"    v_mul_u32_u24 v1, {U*1024}, v1")
            o.append("    v_lshl_add_u32 v0, v0, 4, v1")
            o.append("    v_add_u32 v0, s12, v0")
        else:
            o.append("    v_lshlrev_b32 v0, 4, v0")
            o.append("    v_add_u32 v0, s12, v0")
        step = 1024
    else:
        o.append("    v_lshlrev_b32 v0, 4, v0")
        o.append("    v_add_u32 v0, s12, v0")
        step = block * 16
    addr = {}
    nreg = 1
    cur_base = 0
    regs = [(0, 0)]
    for u in range(U):
        off = u * step
        found = None
        for (vr, b) in regs:
            if -4096 <= off - b <= 4095:
                found = (vr, off - b); break
        if not found:
            vr = nreg; nreg += 1
            b = off + 4096 if step < 4096 else off
            o.append(f"    v_add_u32 v{vr}, {b}, v0")
            regs.append((vr, b))
            found = (vr, off - b)
        addr[u] = found
    base = (nreg + 1) // 2 * 2
    T = base; base += 4
    Xr = [base + 8 * u for u in range(U)]
    Fr = [base + 8 * u + 4 for u in range(U)]
    top = base + 8 * U
    o.append("    s_waitcnt lgkmcnt(0)")
    o.append("    s_load_dword s14, s[8:9], 0")
    for u in range(U):
        vr, imm = addr[u]
        o.append(f"    global_load_dwordx4 v[{Fr[u]}:{Fr[u]+3}], v{vr}, s[6:7] offset:{imm} {ldf}".rstrip())
        o.append(f"    global_load_dwordx4 v[{Xr[u]}:{Xr[u]+3}], v{vr}, s[4:5] offset:{imm} {ldf}".rstrip())
    o.append("    s_waitcnt lgkmcnt(0)")
    o.append("    s_lshl_b32 s14, s14, 16")
    for u in range(U):
        n = 2 * U - 2 * (u + 1) + u
        o.append(f"    s_waitcnt vmcnt({min(n,63)})")
        compute(o, Fr[u], Xr[u], T, 14)
        vr, imm = addr[u]
        o.append(f"    global_store_dwordx4 v{vr}, v[{Xr[u]}:{Xr[u]+3}], s[10:11] offset:{imm} {stf}".rstrip())
    o.append("L_done:")
    o.append("    s_endpgm")
    o.append('.section .rodata,"a"')
    o.append(".p2align 6")
    o.append(f".amdhsa_kernel {name}_kernel")
    o.append(f"  .amdhsa_next_free_vgpr {top}")
    o.append("  .amdhsa_next_free_sgpr 16")
    o.append(f"  .amdhsa_accum_offset {(top + 3) // 4 * 4}")
    o.append("  .amdhsa_group_segment_fixed_size 0")
    o.append("  .amdhsa_kernarg_size 48")
    o.append("  .amdhsa_user_sgpr_count 2")
    o.append("  .amdhsa_user_sgpr_kernarg_segment_ptr 1")
    o.append("  .amdhsa_system_sgpr_workgroup_id_x 1")
    o.append("  .amdhsa_float_denorm_mode_32 3")
    o.append("  .amdhsa_float_denorm_mode_16_64 3")
    o.append(".end_amdhsa_kernel")
    return "\n".join(o) + "\n"

if __name__ == "__main__":
    ap = argparse.ArgumentParser()
    ap.add_argument("--block", type=int, default=256)
    ap.add_argument("--U", type=int, default=2)
    ap.add_argument("--layout", default="wave")
    ap.add_argument("--ldf", default="")
    ap.add_argument("--stf", default="")
    ap.add_argument("-o", default="-")
    a = ap.parse_args()
    s = gen(a.block, a.U, a.layout, a.ldf, a.stf)
    if a.o == "-": sys.stdout.write(s)
    else: open(a.o, "w").write(s)
```

```python
import sys, argparse
from gen import HEADER, NCHUNK, compute

def gen(block, U, ldf, stf, sel, K):
    name = "standalone__rezero__sampling"
    lanes = NCHUNK // U
    nwg = lanes // block
    nwaves = lanes // 64
    assert nwaves % 256 == 0
    per = nwaves // 256
    o = []
    o.append(HEADER + f"; @launch kernel={name}_kernel grid=({nwg},1,1) block=({block},1,1) lds=0\n; @launch kernel=spin_kernel grid=(1,1,1) block=(256,1,1) lds=256")
    o.append('.amdgcn_target "amdgcn-amd-amdhsa--gfx950"')
    o.append(".text")
    o.append(f".globl {name}_kernel")
    o.append(".p2align 8")
    o.append(f".type {name}_kernel,@function")
    o.append(f"{name}_kernel:")
    o.append("    s_memrealtime s[20:21]")
    o.append("    s_load_dwordx8 s[4:11], s[0:1], 0")
    o.append("    s_load_dwordx2 s[28:29], s[0:1], 40")
    o.append(f"    s_cmp_ge_u32 s2, {nwg}")
    o.append("    s_cbranch_scc1 L_done")
    wgbytes = block * 16 * U
    o.append(f"    s_mul_i32 s12, s2, {wgbytes}")
    o.append("    s_mov_b32 s3, 0xffff0000")
    assert U <= 8
    bias = 4096 if U > 4 else 0
    o.append("    v_lshrrev_b32 v1, 6, v0")
    o.append("    v_and_b32 v0, 63, v0")
    o.append(f"    s_mul_i32 s30, s2, {block//64}")
    o.append("    v_add_u32 v80, s30, v1")
    o.append("    v_lshlrev_b32 v80, 4, v80")
    o.append(f"    v_mul_u32_u24 v1, {U*1024}, v1")
    o.append("    v_lshl_add_u32 v0, v0, 4, v1")
    if bias:
        o.append(f"    s_add_u32 s12, s12, {bias}")
    o.append("    v_add_u32 v0, s12, v0")
    T = 2; base = 6
    Xr = [base + 8 * u for u in range(U)]
    Fr = [base + 8 * u + 4 for u in range(U)]
    o.append("    s_waitcnt lgkmcnt(0)")
    o.append("    s_memrealtime s[22:23]")
    o.append("    s_load_dword s14, s[8:9], 0")
    for u in range(U):
        imm = u * 1024 - bias
        o.append(f"    global_load_dwordx4 v[{Fr[u]}:{Fr[u]+3}], v0, s[6:7] offset:{imm} {ldf}".rstrip())
        o.append(f"    global_load_dwordx4 v[{Xr[u]}:{Xr[u]+3}], v0, s[4:5] offset:{imm} {ldf}".rstrip())
    o.append("    s_waitcnt lgkmcnt(0)")
    o.append("    s_lshl_b32 s16, s14, 16")
    for u in range(U):
        n = 2 * U - 2 * (u + 1) + u
        o.append(f"    s_waitcnt vmcnt({min(n,63)})")
        if u == 0:
            o.append("    s_memrealtime s[24:25]")
        compute(o, Fr[u], Xr[u], T, 16)
        imm = u * 1024 - bias
        o.append(f"    global_store_dwordx4 v0, v[{Xr[u]}:{Xr[u]+3}], s[10:11] offset:{imm} {stf}".rstrip())
    o.append("    s_waitcnt vmcnt(0)")
    o.append("    s_memrealtime s[26:27]")
    o.append("    s_waitcnt lgkmcnt(0)")
    o.append("    v_mov_b32 v82, s20")
    o.append("    v_mov_b32 v83, s22")
    o.append("    v_mov_b32 v84, s24")
    o.append("    v_mov_b32 v85, s26")
    o.append("    s_mov_b64 exec, 1")
    o.append("    global_store_dwordx4 v80, v[82:85], s[28:29]")
    o.append("L_done:")
    o.append("    s_endpgm")
    o.append(".p2align 8")
    o.append(".globl spin_kernel")
    o.append(".type spin_kernel,@function")
    o.append("spin_kernel:")
    o.append("    s_memrealtime s[20:21]")
    o.append("    s_load_dwordx4 s[4:7], s[0:1], 32")
    o.append("    s_cmp_ge_u32 s2, 1")
    o.append("    s_cbranch_scc1 L_done2")
    o.append("    s_waitcnt lgkmcnt(0)")
    o.append("    s_load_dword s8, s[6:7], 0")
    o.append("    v_lshlrev_b32 v1, 4, v0")
    for r in range(10, 22, 2):
        o.append(f"    v_mov_b32 v{r}, -1")
        o.append(f"    v_mov_b32 v{r+1}, 0")
    o.append("    s_waitcnt lgkmcnt(0)")
    o.append("    s_sub_u32 s8, s8, 0x100000")
    for i in range(per):
        o.append(f"    global_load_dwordx4 v[4:7], v1, s[6:7]")
        o.append("    v_add_u32 v1, 4096, v1")
        o.append("    s_waitcnt vmcnt(0)")
        o.append("    v_sub_u32 v8, v5, v4                ; t1-t0")
        o.append("    v_sub_u32 v9, v6, v5                ; t2-t1")
        for r in range(4, 8):
            o.append(f"    v_subrev_u32 v{r}, s8, v{r}")
        o.append("    v_min_u32 v10, v10, v4")
        o.append("    v_max_u32 v11, v11, v4")
        o.append("    v_min_u32 v12, v12, v8")
        o.append("    v_max_u32 v13, v13, v8")
        o.append("    v_min_u32 v14, v14, v6")
        o.append("    v_max_u32 v15, v15, v6")
        o.append("    v_min_u32 v16, v16, v7")
        o.append("    v_max_u32 v17, v17, v7")
        o.append("    v_min_u32 v18, v18, v5")
        o.append("    v_max_u32 v19, v19, v5")
        o.append("    v_min_u32 v20, v20, v9")
        o.append("    v_max_u32 v21, v21, v9")
    o.append("    v_mov_b32 v30, 0")
    o.append("    v_mov_b32 v31, -1")
    o.append("    v_mov_b32 v32, 0")
    for j in range(6):
        o.append(f"    ds_write_b32 v30, v31 offset:{8*j}")
        o.append(f"    ds_write_b32 v30, v32 offset:{8*j+4}")
    o.append("    s_waitcnt lgkmcnt(0)")
    o.append("    s_barrier")
    for j in range(6):
        o.append(f"    ds_min_u32 v30, v{10+2*j} offset:{8*j}")
        o.append(f"    ds_max_u32 v30, v{11+2*j} offset:{8*j+4}")
    o.append("    s_waitcnt lgkmcnt(0)")
    o.append("    s_barrier")
    o.append("    ds_read_b128 v[10:13], v30 offset:0")
    o.append("    ds_read_b128 v[14:17], v30 offset:16")
    o.append("    ds_read_b128 v[18:21], v30 offset:32")
    o.append("    s_waitcnt lgkmcnt(0)")
    for r in (11, 14, 15, 16, 17, 18, 19):
        o.append(f"    v_sub_u32 v{r}, v{r}, v10")
    o.append("    s_sub_u32 s9, s20, s8")
    o.append("    v_sub_u32 v10, s9, v10")
    o.append("    s_sub_u32 s4, s4, 512")
    o.append("    s_subb_u32 s5, s5, 0")
    o.append("    v_cmp_eq_u32 vcc, 0, v0")
    o.append("    s_and_saveexec_b64 s[12:13], vcc")
    o.append("    s_cbranch_execz L_done2")
    o.append("    global_store_dwordx4 v30, v[10:13], s[4:5]")
    o.append("    global_store_dwordx4 v30, v[14:17], s[4:5] offset:16")
    o.append("    global_store_dwordx4 v30, v[18:21], s[4:5] offset:32")
    o.append("    s_nop 1")
    o.append(f"    v_readfirstlane_b32 s10, v{sel}")
    o.append("    s_min_u32 s10, s10, 5000")
    o.append(f"    s_mul_i32 s10, s10, {K}")
    o.append("    s_memrealtime s[22:23]")
    o.append("    s_waitcnt lgkmcnt(0)")
    o.append("L_spin:")
    o.append("    s_memrealtime s[24:25]")
    o.append("    s_waitcnt lgkmcnt(0)")
    o.append("    s_sub_u32 s11, s24, s22")
    o.append("    s_cmp_lt_u32 s11, s10")
    o.append("    s_cbranch_scc1 L_spin")
    o.append("L_done2:")
    o.append("    s_endpgm")
    o.append('.section .rodata,"a"')
    for kn, top in ((f"{name}_kernel", 88), ("spin_kernel", 40)):
        o.append(".p2align 6")
        o.append(f".amdhsa_kernel {kn}")
        o.append(f"  .amdhsa_next_free_vgpr {top}")
        o.append("  .amdhsa_next_free_sgpr 32")
        o.append(f"  .amdhsa_accum_offset {(top + 3) // 4 * 4}")
        o.append("  .amdhsa_group_segment_fixed_size 0")
        o.append("  .amdhsa_kernarg_size 48")
        o.append("  .amdhsa_user_sgpr_count 2")
        o.append("  .amdhsa_user_sgpr_kernarg_segment_ptr 1")
        o.append("  .amdhsa_system_sgpr_workgroup_id_x 1")
        o.append("  .amdhsa_float_denorm_mode_32 3")
        o.append("  .amdhsa_float_denorm_mode_16_64 3")
        o.append(".end_amdhsa_kernel")
    return "\n".join(o) + "\n"

if __name__ == "__main__":
    ap = argparse.ArgumentParser()
    ap.add_argument("--block", type=int, default=256)
    ap.add_argument("--U", type=int, default=4)
    ap.add_argument("--ldf", default="")
    ap.add_argument("--stf", default="")
    ap.add_argument("--sel", type=int, default=17)
    ap.add_argument("--K", type=int, default=0)
    ap.add_argument("-o", default="-")
    a = ap.parse_args()
    s = gen(a.block, a.U, a.ldf, a.stf, a.sel, a.K)
    if a.o == "-": sys.stdout.write(s)
    else: open(a.o, "w").write(s)
```

```python
import sys, re, argparse

def spin(nwaves, q, kind, K):
    per = nwaves // 256
    assert per * 256 == nwaves
    o = []
    o.append(".p2align 8")
    o.append(".globl spin_kernel")
    o.append(".type spin_kernel,@function")
    o.append("spin_kernel:")
    o.append("    s_memrealtime s[20:21]")
    o.append("    s_load_dwordx4 s[4:7], s[0:1], 32")
    o.append("    s_cmp_ge_u32 s2, 1")
    o.append("    s_cbranch_scc1 L_done2")
    o.append("    s_waitcnt lgkmcnt(0)")
    o.append("    s_load_dword s8, s[6:7], 0")
    o.append("    v_lshlrev_b32 v1, 5, v0")
    for i in range(8):
        o.append(f"    v_mov_b32 v{20+3*i}, -1")
        o.append(f"    v_mov_b32 v{21+3*i}, 0")
        o.append(f"    v_mov_b32 v{22+3*i}, 0")
    o.append("    s_waitcnt lgkmcnt(0)")
    o.append("    s_sub_u32 s8, s8, 0x1000")
    o.append(f"    s_mov_b32 s9, {per}")
    o.append("L_rec:")
    o.append("    global_load_dwordx4 v[4:7], v1, s[6:7]")
    o.append("    global_load_dwordx2 v[8:9], v1, s[6:7] offset:16")
    o.append("    v_add_u32 v1, 8192, v1")
    o.append("    s_waitcnt vmcnt(0)")
    o.append("    v_sub_u32 v10, v5, v4                ; t1-t0")
    o.append("    v_sub_u32 v11, v6, v5                ; t1b-t1")
    for r in range(4, 10):
        o.append(f"    v_subrev_u32 v{r}, s8, v{r}")
    for i in range(8):
        o.append(f"    v_min_u32 v{20+3*i}, v{20+3*i}, v{4+i}")
        o.append(f"    v_max_u32 v{21+3*i}, v{21+3*i}, v{4+i}")
        o.append(f"    v_add_u32 v{22+3*i}, v{22+3*i}, v{4+i}")
    o.append("    s_sub_u32 s9, s9, 1")
    o.append("    s_cmp_lg_u32 s9, 0")
    o.append("    s_cbranch_scc1 L_rec")
    o.append("    v_mov_b32 v50, 0")
    o.append("    v_mov_b32 v51, -1")
    o.append("    v_mov_b32 v52, 0")
    for i in range(8):
        o.append(f"    ds_write_b32 v50, v51 offset:{12*i}")
        o.append(f"    ds_write_b32 v50, v52 offset:{12*i+4}")
        o.append(f"    ds_write_b32 v50, v52 offset:{12*i+8}")
        o.append("    s_waitcnt lgkmcnt(0)")
    o.append("    s_barrier")
    for i in range(8):
        o.append(f"    ds_min_u32 v50, v{20+3*i} offset:{12*i}")
        o.append(f"    ds_max_u32 v50, v{21+3*i} offset:{12*i+4}")
        o.append(f"    ds_add_u32 v50, v{22+3*i} offset:{12*i+8}")
        o.append("    s_waitcnt lgkmcnt(0)")
    o.append("    s_barrier")
    o.append("    ds_read_b32 v10, v50 offset:0          ; min t0")
    off = 12 * min(q, 7) + {"min": 0, "max": 4, "mean": 8}[kind]
    o.append(f"    ds_read_b32 v11, v50 offset:{off}")
    o.append("    s_waitcnt lgkmcnt(0)")
    o.append("    s_nop 0")
    o.append("    v_readfirstlane_b32 s12, v10")
    o.append("    v_readfirstlane_b32 s10, v11")
    o.append("    s_nop 2")
    mult = K
    if q == 8:
        o.append("    s_sub_u32 s10, s20, s8")
        o.append("    s_sub_u32 s10, s10, s12")
        o.append(f"    s_mul_i32 s10, s10, {K}")
    elif kind == "mean":
        if q < 6:
            o.append(f"    s_mul_i32 s12, s12, {nwaves}")
            o.append("    s_sub_u32 s10, s10, s12")
        o.append(f"    s_mul_i32 s10, s10, {K}")
        o.append(f"    s_mov_b32 s13, {(1<<32)//nwaves}")
        o.append("    s_mul_hi_u32 s10, s10, s13")
    else:
        if q < 6:
            o.append("    s_sub_u32 s10, s10, s12")
        o.append(f"    s_mul_i32 s10, s10, {K}")
    o.append("    s_min_u32 s10, s10, 50000")
    o.append("    v_cmp_eq_u32 vcc, 0, v0")
    o.append("    s_and_saveexec_b64 s[14:15], vcc")
    o.append("    s_cbranch_execz L_done2")
    o.append("    v_mov_b32 v12, s10")
    o.append("    global_store_dword v50, v12, s[4:5]")
    o.append("    s_memrealtime s[22:23]")
    o.append("    s_waitcnt lgkmcnt(0)")
    o.append("L_spin:")
    o.append("    s_memrealtime s[24:25]")
    o.append("    s_waitcnt lgkmcnt(0)")
    o.append("    s_sub_u32 s11, s24, s22")
    o.append("    s_cmp_lt_u32 s11, s10")
    o.append("    s_cbranch_scc1 L_spin")
    o.append("L_done2:")
    o.append("    s_endpgm")
    kd = """.p2align 6
.amdhsa_kernel spin_kernel
  .amdhsa_next_free_vgpr 56
  .amdhsa_next_free_sgpr 32
  .amdhsa_accum_offset 56
  .amdhsa_group_segment_fixed_size 0
  .amdhsa_kernarg_size 48
  .amdhsa_user_sgpr_count 2
  .amdhsa_user_sgpr_kernarg_segment_ptr 1
  .amdhsa_system_sgpr_workgroup_id_x 1
.end_amdhsa_kernel
"""
    return "\n".join(o) + "\n", kd

if __name__ == "__main__":
    src, q, kind, K, out = sys.argv[1], int(sys.argv[2]), sys.argv[3], int(sys.argv[4]), sys.argv[5]
    s = open(src).read()
    m = re.search(r"; @launch grid=\((\d+),1,1\) block=\((\d+),1,1\) lds=(\d+)", s)
    g, b = int(m.group(1)), int(m.group(2))
    nwaves = g * b // 64
    s = s.replace(m.group(0), f"; @launch kernel=standalone__rezero__sampling_kernel grid=({g},1,1) block=({b},1,1) lds={m.group(3)}\n; @launch kernel=spin_kernel grid=(1,1,1) block=(256,1,1) lds=256")
    code, kd = spin(nwaves, q, kind, K)
    s = s.replace('.section .rodata,"a"', code + '.section .rodata,"a"')
    s += kd
    open(out, "w").write(s)
```

```python
import sys, re
from gendiag3 import spin
src, out = sys.argv[1], sys.argv[2]
K = int(sys.argv[3]) if len(sys.argv) > 3 else 20
s = open(src).read()
m = re.search(r"; @launch grid=\((\d+),1,1\) block=\((\d+),1,1\) lds=(\d+)", s)
g, b = int(m.group(1)), int(m.group(2))
nwv = b // 64
nwaves = g * nwv
nv = int(re.search(r"next_free_vgpr (\d+)", s).group(1))
W = nv
s = s.replace(m.group(0), f"; @launch kernel=standalone__rezero__sampling_kernel grid=({g},1,1) block=({b},1,1) lds={m.group(3)}\n; @launch kernel=spin_kernel grid=(1,1,1) block=(256,1,1) lds=256")
pro = f"""standalone__rezero__sampling_kernel:
    s_memrealtime s[60:61]
    s_load_dwordx2 s[62:63], s[0:1], 40
    s_mul_i32 s64, s2, {nwv}
    v_lshrrev_b32 v{W}, 6, v0
    v_add_u32 v{W}, s64, v{W}
    v_lshlrev_b32 v{W}, 5, v{W}
"""
s = s.replace("standalone__rezero__sampling_kernel:\n", pro, 1)
epi = f"""    s_waitcnt lgkmcnt(0)
    v_mov_b32 v{W+1}, s60
    s_mov_b64 exec, 1
    global_store_dword v{W}, v{W+1}, s[62:63]
L_done:
"""
assert s.count("L_done:\n") == 1
s = s.replace("L_done:\n", epi)
s = re.sub(r"next_free_vgpr \d+", f"next_free_vgpr {W+2}", s)
s = re.sub(r"accum_offset \d+", f"accum_offset {(W+2+3)//4*4}", s)
s = re.sub(r"next_free_sgpr \d+", "next_free_sgpr 66", s)
code, kd = spin(nwaves, 8, "min", K)
s = s.replace('.section .rodata,"a"', code + '.section .rodata,"a"')
s += kd
open(out, "w").write(s)
```

```python
import sys, re
src, out = sys.argv[1], sys.argv[2]
K = int(sys.argv[3]) if len(sys.argv) > 3 else 20
s = open(src).read()
m = re.search(r"; @launch grid=\((\d+),1,1\) block=\((\d+),1,1\) lds=(\d+)", s)
g, b = int(m.group(1)), int(m.group(2))
nv = int(re.search(r"next_free_vgpr (\d+)", s).group(1))
W = nv
s = s.replace(m.group(0), f"; @launch kernel=standalone__rezero__sampling_kernel grid=({g},1,1) block=({b},1,1) lds={m.group(3)}\n; @launch kernel=spin_kernel grid=(1,1,1) block=(64,1,1) lds=0")
pro = f"""standalone__rezero__sampling_kernel:
    s_memrealtime s[60:61]
    s_load_dwordx2 s[62:63], s[0:1], 40
    v_cmp_gt_u32 s[66:67], 1, v0
    s_lshl_b32 s64, s2, 2
    v_mov_b32 v{W}, s64
    s_cmp_lt_u32 s2, 8
    s_cselect_b64 s[66:67], s[66:67], 0
"""
s = s.replace("standalone__rezero__sampling_kernel:\n", pro, 1)
mid = f"""    s_waitcnt lgkmcnt(0)
    s_mov_b64 exec, s[66:67]
    s_cbranch_execz L_nostamp
    v_mov_b32 v{W+1}, s60
    global_store_dword v{W}, v{W+1}, s[62:63]
L_nostamp:
    s_mov_b64 exec, -1
"""
s = s.replace("    s_waitcnt lgkmcnt(0)\n", mid, 1)
s = re.sub(r"next_free_vgpr \d+", f"next_free_vgpr {W+2}", s)
s = re.sub(r"accum_offset \d+", f"accum_offset {(W+2+3)//4*4}", s)
s = re.sub(r"next_free_sgpr \d+", "next_free_sgpr 68", s)
code = f""".p2align 8
.globl spin_kernel
.type spin_kernel,@function
spin_kernel:
    s_memrealtime s[20:21]
    s_load_dwordx4 s[4:7], s[0:1], 32       ; debug, ws
    s_cmp_ge_u32 s2, 1
    s_cbranch_scc1 L_done2
    s_waitcnt lgkmcnt(0)
    s_load_dwordx8 s[8:15], s[6:7], 0
    s_waitcnt lgkmcnt(0)
""" + "".join(f"    s_sub_u32 s{i}, s20, s{i}\n" for i in range(8, 16)) + "".join(f"    s_max_u32 s8, s8, s{i}\n" for i in range(9, 16)) + f"""    s_min_u32 s8, s8, 2500
    s_mul_i32 s10, s8, {K}
    s_memrealtime s[22:23]
    s_waitcnt lgkmcnt(0)
L_spin:
    s_memrealtime s[24:25]
    s_waitcnt lgkmcnt(0)
    s_sub_u32 s11, s24, s22
    s_cmp_lt_u32 s11, s10
    s_cbranch_scc1 L_spin
L_done2:
    s_endpgm
"""
kd = """.p2align 6
.amdhsa_kernel spin_kernel
  .amdhsa_next_free_vgpr 8
  .amdhsa_next_free_sgpr 32
  .amdhsa_accum_offset 8
  .amdhsa_group_segment_fixed_size 0
  .amdhsa_kernarg_size 48
  .amdhsa_user_sgpr_count 2
  .amdhsa_user_sgpr_kernarg_segment_ptr 1
  .amdhsa_system_sgpr_workgroup_id_x 1
.end_amdhsa_kernel
"""
s = s.replace('.section .rodata,"a"', code + '.section .rodata,"a"')
s += kd
open(out, "w").write(s)
```

```python
import sys, argparse
from gen import HEADER

def gen(wrot=0, stf="nt", ldf="nt", align=13):
    U = 5
    name = "standalone__rezero__sampling"
    o = []
    A = o.append
    A(HEADER + "; @launch grid=(256,1,1) block=(512,1,1) lds=0")
    A(";")
    A('.amdgcn_target "amdgcn-amd-amdhsa--gfx950"')
    A(".text")
    if align > 8:
        A(f".p2align {align}")
    A(f".globl {name}_kernel")
    A(".p2align 8")
    A(f".type {name}_kernel,@function")
    A(f"{name}_kernel:")
    A("    s_load_dwordx8 s[4:11], s[0:1], 0")
    A("    s_cmp_ge_u32 s2, 256")
    A("    s_cbranch_scc1 L_done")
    A("    s_and_b32 s13, s2, 7")
    A("    s_lshr_b32 s2, s2, 3")
    A("    s_lshl_b32 s13, s13, 5")
    A("    s_add_u32 s2, s2, s13")
    A("    s_mul_i32 s12, s2, 40960")
    A("    v_lshrrev_b32 v1, 6, v0")
    if wrot:
        A(f"    s_lshr_b32 s13, s2, {wrot}")
        A("    v_add_u32 v1, s13, v1")
    else:
        A("    v_add_u32 v1, s2, v1")
    A("    v_and_b32 v1, 7, v1")
    A("    v_and_b32 v0, 63, v0")
    A("    v_mul_u32_u24 v1, 5120, v1")
    A("    s_add_u32 s12, s12, 4096")
    A("    v_lshl_add_u32 v0, v0, 4, v1")
    A("    s_mov_b32 s3, 0xffff0000")
    A("    v_add_u32 v0, s12, v0")
    T = 2
    base = T + 16
    Xr = [base + 8 * u for u in range(U)]
    Fr = [base + 8 * u + 4 for u in range(U)]
    top = base + 8 * U
    A("    s_waitcnt lgkmcnt(0)")
    A("    s_load_dword s14, s[8:9], 0")
    for u in range(U):
        imm = u * 1024 - 4096
        A(f"    global_load_dwordx4 v[{Fr[u]}:{Fr[u]+3}], v0, s[6:7] offset:{imm} {ldf}".rstrip())
        A(f"    global_load_dwordx4 v[{Xr[u]}:{Xr[u]+3}], v0, s[4:5] offset:{imm} {ldf}".rstrip())
    A("    s_bitcmp1_b32 s8, 1")
    A("    s_cselect_b32 s15, 0, 16")
    A("    s_waitcnt lgkmcnt(0)")
    A("    s_lshl_b32 s16, s14, s15")
    A("    s_and_b32 s16, s16, s3")
    A("    s_mov_b32 s17, s16")
    def compute(u):
        F, X = Fr[u], Xr[u]
        P = [T + 4 * d for d in range(4)]
        for d in range(4):
            A(f"    v_lshlrev_b32 v{P[d]}, 16, v{F+d}")
            A(f"    v_and_b32 v{P[d]+1}, s3, v{F+d}")
        for d in range(4):
            A(f"    v_pk_mul_f32 v[{P[d]}:{P[d]+1}], s[16:17], v[{P[d]}:{P[d]+1}]")
        for d in range(4):
            A(f"    v_lshlrev_b32 v{P[d]+2}, 16, v{X+d}")
            A(f"    v_and_b32 v{P[d]+3}, s3, v{X+d}")
        for d in range(4):
            A(f"    v_cvt_pk_bf16_f32 v{P[d]}, 0, v{P[d]}" if d == 0 and u == 0 else f"    v_cvt_pk_bf16_f32 v{P[d]}, 0, v{P[d]}")
            A(f"    v_cvt_pk_bf16_f32 v{P[d]+1}, 0, v{P[d]+1}")
        for d in range(4):
            A(f"    v_pk_add_f32 v[{P[d]}:{P[d]+1}], v[{P[d]+2}:{P[d]+3}], v[{P[d]}:{P[d]+1}]")
        for d in range(4):
            A(f"    v_cvt_pk_bf16_f32 v{X+d}, v{P[d]}, v{P[d]+1}")
    def store(u):
        imm = u * 1024 - 4096
        A(f"    global_store_dwordx4 v0, v[{Xr[u]}:{Xr[u]+3}], s[10:11] offset:{imm} {stf}".rstrip())
    for u in range(U - 1):
        A(f"    s_waitcnt vmcnt({2 * (U - 1 - u)})")
        compute(u)
    A("    s_waitcnt vmcnt(0)")
    A("    s_barrier")
    for u in range(U - 1):
        store(u)
    compute(U - 1)
    store(U - 1)
    A("L_done:")
    A("    s_endpgm")
    A('.section .rodata,"a"')
    A(".p2align 6")
    A(f".amdhsa_kernel {name}_kernel")
    A(f"  .amdhsa_next_free_vgpr {top}")
    A("  .amdhsa_next_free_sgpr 18")
    A(f"  .amdhsa_accum_offset {(top + 3) // 4 * 4}")
    A("  .amdhsa_group_segment_fixed_size 0")
    A("  .amdhsa_kernarg_size 48")
    A("  .amdhsa_user_sgpr_count 2")
    A("  .amdhsa_user_sgpr_kernarg_segment_ptr 1")
    A("  .amdhsa_system_sgpr_workgroup_id_x 1")
    A("  .amdhsa_float_denorm_mode_32 3")
    A("  .amdhsa_float_denorm_mode_16_64 3")
    A(".end_amdhsa_kernel")
    return "\n".join(o) + "\n"

if __name__ == "__main__":
    ap = argparse.ArgumentParser()
    ap.add_argument("--wrot", type=int, default=0)
    ap.add_argument("--stf", default="nt")
    ap.add_argument("--align", type=int, default=13)
    ap.add_argument("-o", default="-")
    a = ap.parse_args()
    s = gen(a.wrot, a.stf, align=a.align)
    if a.o == "-": sys.stdout.write(s)
    else: open(a.o, "w").write(s)
```

```python
import sys, re
from gendiag3 import spin
src, out, q, kind, K = sys.argv[1], sys.argv[2], int(sys.argv[3]), sys.argv[4], int(sys.argv[5])
s = open(src).read()
m = re.search(r"; @launch grid=\((\d+),1,1\) block=\((\d+),1,1\) lds=(\d+)", s)
g, b = int(m.group(1)), int(m.group(2))
nwv = b // 64; nwaves = g * nwv
nv = int(re.search(r"next_free_vgpr (\d+)", s).group(1))
W = (nv + 1) // 2 * 2
s = s.replace(m.group(0), f"; @launch kernel=standalone__rezero__sampling_kernel grid=({g},1,1) block=({b},1,1) lds={m.group(3)}\n; @launch kernel=spin_kernel grid=(1,1,1) block=(256,1,1) lds=256")
pro = f"""standalone__rezero__sampling_kernel:
    s_memrealtime s[60:61]
    s_load_dwordx2 s[62:63], s[0:1], 40
    s_mul_i32 s64, s2, {nwv}
    v_lshrrev_b32 v{W+6}, 6, v0
    v_add_u32 v{W+6}, s64, v{W+6}
    v_lshlrev_b32 v{W+6}, 5, v{W+6}
"""
s = s.replace("standalone__rezero__sampling_kernel:\n", pro, 1)
assert "    s_waitcnt vmcnt(0)\n" in s
s = s.replace("    s_waitcnt vmcnt(0)\n", "    s_waitcnt vmcnt(0)\n    s_memrealtime s[66:67]\n", 1)
epi = f"""    s_waitcnt lgkmcnt(0)
    v_mov_b32 v{W}, s60
    v_mov_b32 v{W+1}, s60
    v_mov_b32 v{W+2}, s60
    v_mov_b32 v{W+3}, s60
    v_mov_b32 v{W+4}, s66
    v_mov_b32 v{W+5}, s66
    s_mov_b64 exec, 1
    global_store_dwordx4 v{W+6}, v[{W}:{W+3}], s[62:63]
    global_store_dwordx2 v{W+6}, v[{W+4}:{W+5}], s[62:63] offset:16
L_done:
"""
assert s.count("L_done:\n") == 1
s = s.replace("L_done:\n", epi)
s = re.sub(r"next_free_vgpr \d+", f"next_free_vgpr {W+8}", s)
s = re.sub(r"accum_offset \d+", f"accum_offset {(W+8+3)//4*4}", s)
s = re.sub(r"next_free_sgpr \d+", "next_free_sgpr 68", s)
code, kd = spin(nwaves, q, kind, K)
s = s.replace('.section .rodata,"a"', code + '.section .rodata,"a"')
s += kd
open(out, "w").write(s)
```

```python
import sys
from gen import HEADER

def gen():
    U = 5
    name = "standalone__rezero__sampling"
    o = []
    A = o.append
    A(HEADER + "; @launch grid=(256,1,1) block=(512,1,1) lds=0")
    A(";")
    A(";")
    A('.amdgcn_target "amdgcn-amd-amdhsa--gfx950"')
    A(".text")
    A(".p2align 13")
    A(f".globl {name}_kernel")
    A(".p2align 8")
    A(f".type {name}_kernel,@function")
    A(f"{name}_kernel:")
    A("    s_load_dwordx8 s[4:11], s[0:1], 0")
    A("    s_cmp_ge_u32 s2, 256")
    A("    s_cbranch_scc1 L_done")
    A("    s_and_b32 s13, s2, 7")
    A("    s_lshr_b32 s2, s2, 3")
    A("    s_lshl_b32 s13, s13, 5")
    A("    s_add_u32 s2, s2, s13                    ; tile = (wg % 8) * 32 + wg / 8")
    A("    s_mul_i32 s12, s2, 40")
    A("    v_lshrrev_b32 v1, 6, v0")
    A("    v_add_u32 v1, s2, v1")
    A("    v_and_b32 v1, 7, v1                      ; slot = (wave + tile) % 8")
    A("    v_mul_u32_u24 v1, 5, v1")
    A("    v_add_u32 v1, s12, v1")
    A("    v_bfe_u32 v2, v0, 3, 3")
    A("    v_and_b32 v0, 7, v0")
    A("    v_lshlrev_b32 v2, 11, v2")
    A("    v_lshl_add_u32 v0, v0, 4, v2")
    A("    v_lshl_add_u32 v0, v1, 7, v0             ; k*2048 + (lane%8)*16 + g0*128")
    A("    s_movk_i32 s13, 14336                    ; 16384 - 16*128")
    A("    s_mov_b32 s3, 0xffff0000")
    AD = 58
    for u in range(U):
        if u:
            A("    v_add_u32 v1, 1, v1")
        A("    v_lshrrev_b32 v2, 4, v1")
        A(f"    v_mad_u32_u24 v{AD+u}, v2, s13, v0" + ("        ; + (g/16)*14336; u*128 is the immediate" if u == 0 else ""))
    T = 2
    base = T + 16
    Xr = [base + 8 * u for u in range(U)]
    Fr = [base + 8 * u + 4 for u in range(U)]
    top = AD + U
    A("    s_waitcnt lgkmcnt(0)")
    A("    s_load_dword s14, s[8:9], 0")
    for u in range(U):
        A(f"    global_load_dwordx4 v[{Fr[u]}:{Fr[u]+3}], v{AD+u}, s[6:7] offset:{u*128} nt")
        A(f"    global_load_dwordx4 v[{Xr[u]}:{Xr[u]+3}], v{AD+u}, s[4:5] offset:{u*128} nt")
    A("    s_bitcmp1_b32 s8, 1")
    A("    s_cselect_b32 s15, 0, 16")
    A("    s_waitcnt lgkmcnt(0)")
    A("    s_lshl_b32 s16, s14, s15")
    A("    s_and_b32 s16, s16, s3")
    A("    s_mov_b32 s17, s16")
    P = [T + 4 * d for d in range(4)]
    def compute(u):
        F, X = Fr[u], Xr[u]
        c = (lambda s: s) if u == 0 else (lambda s: "")
        for d in range(4):
            A(f"    v_lshlrev_b32 v{P[d]}, 16, v{F+d}" + (c("               ; fx -> f32") if d == 0 else ""))
            A(f"    v_and_b32 v{P[d]+1}, s3, v{F+d}")
        for d in range(4):
            A(f"    v_pk_mul_f32 v[{P[d]}:{P[d]+1}], s[16:17], v[{P[d]}:{P[d]+1}]")
        for d in range(4):
            A(f"    v_lshlrev_b32 v{P[d]+2}, 16, v{X+d}" + (c("               ; x -> f32") if d == 0 else ""))
            A(f"    v_and_b32 v{P[d]+3}, s3, v{X+d}")
        for d in range(4):
            A(f"    v_cvt_pk_bf16_f32 v{P[d]}, 0, v{P[d]}" + (c("             ; bf16(alpha*fx), left in f32 position") if d == 0 else ""))
            A(f"    v_cvt_pk_bf16_f32 v{P[d]+1}, 0, v{P[d]+1}")
        for d in range(4):
            A(f"    v_pk_add_f32 v[{P[d]}:{P[d]+1}], v[{P[d]+2}:{P[d]+3}], v[{P[d]}:{P[d]+1}]")
        for d in range(4):
            A(f"    v_cvt_pk_bf16_f32 v{X+d}, v{P[d]}, v{P[d]+1}")
    def store(u):
        A(f"    global_store_dwordx4 v{AD+u}, v[{Xr[u]}:{Xr[u]+3}], s[10:11] offset:{u*128} nt")
    for u in range(U - 1):
        A(f"    s_waitcnt vmcnt({2 * (U - 1 - u)})")
        compute(u)
    A("    s_waitcnt vmcnt(0)")
    A("    s_barrier")
    for u in range(U - 1):
        store(u)
    compute(U - 1)
    store(U - 1)
    A("L_done:")
    A("    s_endpgm")
    A('.section .rodata,"a"')
    A(".p2align 6")
    A(f".amdhsa_kernel {name}_kernel")
    A(f"  .amdhsa_next_free_vgpr {top}")
    A("  .amdhsa_next_free_sgpr 18")
    A(f"  .amdhsa_accum_offset {(top + 3) // 4 * 4}")
    A("  .amdhsa_group_segment_fixed_size 0")
    A("  .amdhsa_kernarg_size 48")
    A("  .amdhsa_user_sgpr_count 2")
    A("  .amdhsa_user_sgpr_kernarg_segment_ptr 1")
    A("  .amdhsa_system_sgpr_workgroup_id_x 1")
    A("  .amdhsa_float_denorm_mode_32 3")
    A("  .amdhsa_float_denorm_mode_16_64 3")
    A(".end_amdhsa_kernel")
    return "\n".join(o) + "\n"

if __name__ == "__main__":
    open(sys.argv[1], "w").write(gen())
```
